```python
import torch

def _softmax(x, axis=-1):
    return torch.softmax(x, dim=axis)
def _gelu(x):
    return torch.nn.functional.gelu(x, approximate="tanh")
def _silu(x):
    return torch.nn.functional.silu(x)
def _sigmoid(x):
    return torch.sigmoid(x)
def _layernorm(x, axis=-1, eps=1e-5):
    m = x.mean(dim=axis, keepdim=True)
    v = x.var(dim=axis, keepdim=True, unbiased=False)
    return (x - m) / torch.sqrt(v + eps)
def _scatter_add(tgt, idx, src, axis=0):
    return tgt.clone().index_add_(axis, idx, src)
def _segment_sum(src, seg, n):
    out = torch.zeros((n,) + src.shape[1:], dtype=src.dtype)
    return out.index_add_(0, seg, src)
def _pad(x, pw):
    flat = tuple(v for pair in reversed(pw) for v in pair)
    return torch.nn.functional.pad(x, flat)

kernel_name = 'recurrent_scan__mha_block__dense_activation_relu__prompt'

def setup_inputs():

    _w = (lambda a: (lambda t: t.to(torch.bfloat16) if t.is_floating_point() else t)(torch.as_tensor(a)))
    def _A_setup():
        B, S, D, H = 1, 2048, 640, 32
        return {
            "x": _w((lambda *s: torch.randn(*s, dtype=torch.bfloat16) * 0.05)(B, S, D)),
            "wqkv": _w((lambda *s: torch.randn(*s, dtype=torch.bfloat16) * 0.05)(D, 3 * D)),
            "wo": _w((lambda *s: torch.randn(*s, dtype=torch.bfloat16) * 0.05)(D, D)),
        }
    _A_in = _A_setup()

    def _B_setup():
        B, S, D, Dff = 1, 2048, 640, 1536
        return {
            "x": _w((lambda *s: torch.randn(*s, dtype=torch.bfloat16) * 0.05)(B, S, D)),
            "w1": _w((lambda *s: torch.randn(*s, dtype=torch.bfloat16) * 0.05)(D, Dff)),
            "w2": _w((lambda *s: torch.randn(*s, dtype=torch.bfloat16) * 0.05)(Dff, D)),
        }
    _B_in = _B_setup()

    return {
        "A_x": _A_in["x"],
        "A_wqkv": _A_in["wqkv"],
        "A_wo": _A_in["wo"],
        "B_x": _B_in["x"],
        "B_w1": _B_in["w1"],
        "B_w2": _B_in["w2"],
    }

def reference(A_x, A_wqkv, A_wo, B_x, B_w1, B_w2):
    def _A_ref(x, wqkv, wo):
        B, S, D = x.shape
        H = 32
        Dh = D // H
        qkv = (lambda x, *d: x.permute(*d))((x @ wqkv).reshape(B, S, 3, H, Dh), 2, 0, 3, 1, 4)
        q, k, v = qkv[0], qkv[1], qkv[2]
        scores = torch.einsum("bhqd,bhkd->bhqk", q, k) * (Dh ** -0.5)
        p = _softmax(scores, axis=-1)
        o = torch.einsum("bhqk,bhkd->bhqd", p, v)
        return (lambda x, *d: x.permute(*d))(o, 0, 2, 1, 3).reshape(B, S, D) @ wo

    def _B_ref(x, w1, w2):
        h = torch.einsum("bsd,df->bsf", x, w1)
        zero = torch.zeros_like(h)
        h = torch.maximum(h, zero)
        return torch.einsum("bsf,fd->bsd", h, w2)

    x = A_x
    xn = _layernorm(x, axis=-1)
    s = _A_ref(xn, A_wqkv, A_wo)
    g = _silu(_B_ref(xn, B_w1, B_w2))
    return x + s * g
```

```python
import re

class Asm:
    def __init__(self):
        self.lines = []
    def __call__(self, s):
        for l in s.split("\n"):
            l = l.strip()
            if l:
                self.lines.append(l)
    def label(self, name):
        self.lines.append(name + ":")
    def comment(self, s):
        self.lines.append("; " + s)
    def extend(self, lst):
        for x in lst:
            self(x)

_reg_re = re.compile(r"^(-|abs\()?([vsa])(\d+)\)?$")
_rng_re = re.compile(r"^(-)?([vsa])\[(\d+):(\d+)\]$")

def regs_of(op):
    op = op.strip()
    m = _reg_re.match(op)
    if m:
        return {(m.group(2), int(m.group(3)))}
    m = _rng_re.match(op)
    if m:
        return {(m.group(2), i) for i in range(int(m.group(3)), int(m.group(4)) + 1)}
    if op in ("vcc", "vcc_lo", "vcc_hi"):
        return {("vcc", 0)}
    if op in ("exec", "exec_lo", "exec_hi"):
        return {("exec", 0)}
    if op == "m0":
        return {("m0", 0)}
    return set()

TRANS = ("v_exp_", "v_log_", "v_rcp_", "v_rsq_", "v_sqrt_", "v_sin_", "v_cos_")
def mfma_passes(mn):
    if "32x32x4_2b" in mn or "32x32x4bf16" in mn: return 16
    if "32x32x16" in mn or "32x32x8" in mn: return 8
    if "16x16x32" in mn or "16x16x16" in mn: return 4
    if "4x4x4" in mn: return 2
    raise ValueError(mn)

class Ins:
    def __init__(self, text):
        self.text = text
        t = text.split(";")[0].strip()
        self.is_label = t.endswith(":")
        self.is_dir = t.startswith(".") and not self.is_label
        self.empty = (t == "")
        self.mn = ""
        self.defs = set(); self.uses = set()
        self.kind = "none"
        if self.is_label or self.is_dir or self.empty:
            return
        parts = t.split(None, 1)
        mn = self.mn = parts[0]
        rest = parts[1] if len(parts) > 1 else ""
        ops = [o.strip() for o in rest.split(",")] if rest else []
        mods = ""
        if ops:
            sp = ops[-1].split(None, 1)
            ops[-1] = sp[0]
            mods = sp[1] if len(sp) > 1 else ""
        self.ops = ops; self.mods = mods
        R = [regs_of(o) for o in ops]
        U = lambda xs: set().union(*xs) if xs else set()
        if mn.startswith("v_mfma"):
            self.kind = "mfma"; self.passes = mfma_passes(mn)
            self.D = R[0]; self.A = R[1]; self.B = R[2]; self.C = R[3]
            self.defs = R[0]; self.uses = R[1] | R[2] | R[3]
        elif mn.startswith("v_"):
            self.kind = "valu"
            self.trans = mn.startswith(TRANS)
            self.dpp = ("dpp" in mn) or ("quad_perm" in t) or ("row_" in t)
            if mn.startswith("v_cmp"):
                self.defs = R[0]; self.uses = U(R[1:])
                if mn.startswith("v_cmpx"): self.defs |= {("exec", 0)}
            elif mn.startswith("v_permlane32_swap") or mn.startswith("v_permlane16_swap") or mn.startswith("v_swap"):
                self.defs = R[0] | R[1]; self.uses = R[0] | R[1]
            elif mn.startswith(("v_add_co", "v_sub_co", "v_subrev_co", "v_addc_co", "v_subb_co", "v_div_scale", "v_mad_u64")):
                self.defs = R[0] | R[1]; self.uses = U(R[2:])
            elif mn.startswith(("v_fmac", "v_dot2c", "v_writelane")):
                self.defs = R[0]; self.uses = U(R)
            elif mn.startswith("v_nop"):
                pass
            else:
                self.defs = R[0]; self.uses = U(R[1:])
                if "UNUSED_PRESERVE" in t or self.dpp: self.uses |= R[0]
        elif mn.startswith(("buffer_", "global_")):
            self.kind = "vmem"
            self.lds = bool(re.search(r"\blds\b", t)) or "load_lds" in mn
            self.store = "store" in mn or "atomic" in mn
            self.wide = mn.endswith(("x3", "x4"))
            if mn.startswith(("buffer_wbl2", "buffer_inv")):
                pass
            elif self.lds:
                self.uses = U(R) | {("m0", 0)}
            elif self.store:
                self.uses = U(R)
                self.data = R[0] if mn.startswith("buffer_") else R[1]
                if "atomic" in mn and "sc0" in t and mn.startswith("buffer_"): self.defs = R[0]
            else:
                self.defs = R[0]; self.uses = U(R[1:])
        elif mn.startswith("ds_"):
            self.kind = "ds"
            if mn.startswith(("ds_read", "ds_bpermute", "ds_permute", "ds_swizzle")) or "_rtn" in mn:
                self.defs = R[0]; self.uses = U(R[1:])
            else:
                self.uses = U(R)
        elif mn.startswith("s_"):
            self.kind = "salu"
            if mn.startswith(("s_cmp", "s_cbranch", "s_branch", "s_waitcnt", "s_barrier", "s_nop", "s_endpgm", "s_setprio", "s_sleep", "s_bitcmp")):
                self.uses = U(R)
            else:
                self.defs = R[0] if R else set(); self.uses = U(R[1:])
                if "saveexec" in mn: self.defs |= {("exec", 0)}
        else:
            raise ValueError("unknown instr: " + text)
    def states(self):
        if self.kind == "none": return 0
        if self.mn == "s_nop": return int(self.ops[0], 0) + 1
        return 1

def vg(s): return {r for r in s if r[0] in ("v", "a")}
def sg(s): return {r for r in s if r[0] in ("s", "vcc")}

def need(p, c):
    n = 0
    if p.kind == "valu":
        pv = vg(p.defs); ps = sg(p.defs)
        if c.kind == "mfma" and pv & c.uses: n = max(n, 2)
        if c.kind == "valu":
            if p.trans and not c.trans and pv & c.uses: n = max(n, 1)
            if c.mn.startswith(("v_readlane", "v_readfirstlane")) and pv & c.uses: n = max(n, 1)
            if c.mn.startswith("v_permlane") and pv & c.uses: n = max(n, 2)
            if c.dpp and pv & c.uses: n = max(n, 2)
            if ps & c.uses:
                n = max(n, 4 if c.mn.startswith(("v_readlane", "v_writelane", "v_div_fmas")) else 2)
            if ("sdwa" in p.mn or "op_sel" in p.text) and not p.mn.startswith("v_pk") and pv & (c.uses | c.defs): n = max(n, 1)
            if p.mn.startswith("v_dot") and pv & (c.uses | c.defs):
                if not (c.mn == p.mn): n = max(n, 3)
            if ("exec", 0) in p.defs: n = max(n, 5)
        if c.kind == "vmem" and ps & c.uses: n = max(n, 5)
        if c.kind == "mfma" and ("exec", 0) in p.defs: n = max(n, 4)
        if p.mn.startswith("v_dot") and c.kind in ("mfma", "vmem", "ds") and pv & c.uses: n = max(n, 3)
    if p.kind == "mfma":
        i = {2: 0, 4: 1, 8: 2, 16: 3}[p.passes]
        if c.kind == "mfma":
            if p.D & c.C:
                if p.D == c.C and p.passes == c.passes: n = max(n, [2, 0, 0, 0][i])
                else: n = max(n, [4, 6, 10, 18][i])
            if p.D & (c.A | c.B): n = max(n, [5, 8, 12, 20][i])
            if p.D & c.D and not (p.D & c.C): n = max(n, [4, 6, 10, 18][i])
        elif c.kind in ("valu", "vmem", "ds"):
            if p.D & (c.uses | c.defs): n = max(n, [5, 8, 12, 20][i])
            if c.kind == "valu" and p.C & c.defs: n = max(n, [1, 3, 7, 15][i])
    if p.kind == "salu" and ("m0", 0) in p.defs and c.kind in ("vmem", "ds") and ("m0", 0) in c.uses:
        n = max(n, 1)
    if p.kind == "vmem" and p.store and getattr(p, "wide", False) and hasattr(p, "data"):
        if p.data & c.defs: n = max(n, 2 if c.kind in ("valu", "mfma") else 1)
    return n

MAXD = 21
def fix_hazards(lines, verbose=False):
    lines = list(lines)
    inserted = 0
    while True:
        ins = [Ins(l) for l in lines]
        lab = {x.text.split(";")[0].strip()[:-1]: i for i, x in enumerate(ins) if x.is_label}
        br = {}
        for i, x in enumerate(ins):
            if x.mn.startswith(("s_cbranch", "s_branch")):
                br.setdefault(lab[x.ops[0]], []).append(i)
        def preds(i):
            out = []
            if i > 0 and ins[i - 1].mn not in ("s_branch", "s_endpgm"):
                out.append(i - 1)
            if ins[i].is_label:
                out += br.get(i, [])
            return out
        change = None
        for i, c in enumerate(ins):
            if c.kind in ("none", "salu"): continue
            worst = 0
            stack = [(p, 0) for p in preds(i)]
            seen = {}
            while stack:
                j, d = stack.pop()
                if d >= MAXD: continue
                if j in seen and seen[j] <= d: continue
                seen[j] = d
                p = ins[j]
                if p.kind != "none":
                    k = need(p, c) - d
                    if k > worst:
                        worst = k; why = p.text
                for q in preds(j):
                    stack.append((q, d + p.states()))
            if worst > 0:
                change = (i, worst, why); break
        if change is None: break
        i, k, why = change
        if verbose: print(f"hazard: +{k} before [{lines[i]}] after [{why}]")
        nops = []
        while k > 0:
            t = min(k, 16); nops.append(f"s_nop {t-1}"); k -= t
        lines[i:i] = nops
        inserted += 1
    return lines
```

```python
from asmlib import Asm
from layout import *

NCH = 20
RING = 6
SLOT = 22528
SCR = RING * SLOT
SCR_CS = SCR
SCR_R = SCR + 1792
SCR_RL = SCR + 2304
K1_LDS = SCR_RL + 4 * 3072

ACC = 16
FA = [128, 132]
FB = [136, 164]
RS, SQ1, SQ2, CS0, CS1, SEL = 192, 196, 200, 204, 208, 212

def vr(a, n): return f"v[{a}:{a+n-1}]"

def gen_k1(a: Asm):
    a("s_cmp_ge_u32 s2, 256")
    a("s_cbranch_scc1 K1_END")
    a("s_load_dwordx4 s[4:7], s[0:1], 0")
    a("s_load_dwordx2 s[8:9], s[0:1], 16")
    a("s_load_dwordx4 s[12:15], s[0:1], 32")
    a("s_load_dwordx2 s[10:11], s[0:1], 64")
    a("v_lshrrev_b32 v1, 6, v0")
    a("v_and_b32 v0, 63, v0")
    a("v_readfirstlane_b32 s35, v1")
    a("s_and_b32 s3, s2, 7")
    a("s_lshr_b32 s32, s2, 3")
    a("s_and_b32 s33, s3, 1")
    a("s_lshl_b32 s33, s33, 3")
    a("s_and_b32 s40, s32, 7")
    a("s_add_u32 s33, s33, s40")
    a("s_lshr_b32 s34, s3, 1")
    a("s_lshl_b32 s34, s34, 2")
    a("s_lshr_b32 s40, s32, 3")
    a("s_add_u32 s34, s34, s40")
    a("s_mul_i32 s41, s34, 11")
    a("s_lshr_b32 s41, s41, 5")
    a("s_mul_i32 s40, s41, 3")
    a("s_sub_u32 s42, s34, s40")
    a("s_min_u32 s41, s41, 3")
    a("s_mul_i32 s44, s42, 224")
    a("s_cmp_eq_u32 s42, 2")
    a("s_cselect_b32 s44, 416, s44")
    a("s_mul_i32 s43, s41, 640")
    a("s_add_u32 s43, s43, s44")
    a("s_sub_u32 s40, s34, 9")
    a("s_mul_i32 s40, s40, 224")
    a("s_cmp_eq_u32 s41, 3")
    a("s_cselect_b32 s43, s40, s43")
    a("s_movk_i32 s45, 3840")
    a("s_cselect_b32 s45, 3072, s45")
    a("s_waitcnt lgkmcnt(0)")
    a("s_cselect_b32 s20, s12, s6")
    a("s_cselect_b32 s21, s13, s7")
    a("s_mul_i32 s22, s45, 640")
    a("s_mov_b32 s23, 0x20000")
    a("s_mov_b32 s16, s4"); a("s_mov_b32 s17, s5"); a(f"s_mov_b32 s18, {2048*1280}"); a("s_mov_b32 s19, 0x20000")
    a("s_mov_b32 s24, s10"); a("s_mov_b32 s25, s11"); a(f"s_mov_b32 s26, {WS_END}"); a("s_mov_b32 s27, 0x20000")
    a("s_cmp_ge_u32 s35, 4")
    a("s_cbranch_scc1 K1_LOADER")

    a("v_and_b32 v1, 31, v0")
    a("v_lshrrev_b32 v2, 5, v0")
    a("v_bfe_u32 v3, v0, 2, 2")
    a("v_xor_b32 v3, v3, v2")
    a("v_lshlrev_b32 v3, 4, v3")
    a("v_lshl_add_u32 v3, v1, 6, v3")
    a("s_lshl_b32 s40, s35, 11")
    a("v_add_u32 v4, s40, v3")
    a("v_xor_b32 v5, 32, v4")
    a("v_lshlrev_b32 v6, 9, v2")
    a("v_bfe_u32 v3, v0, 2, 2")
    a("v_lshl_add_u32 v6, v3, 6, v6")
    a("v_and_b32 v3, 16, v0")
    a("v_lshl_add_u32 v6, v3, 1, v6")
    a("v_and_b32 v3, 3, v0")
    a("v_lshl_add_u32 v6, v3, 3, v6")
    a("v_add_u32 v6, 8192, v6")
    a("v_mov_b32 v7, v4"); a("v_mov_b32 v8, v5"); a("v_mov_b32 v9, v6")
    a("v_lshrrev_b32 v3, 2, v0")
    a("v_xor_b32 v3, v3, v0")
    a("v_and_b32 v3, 4, v3")
    a("v_cmp_eq_u32 vcc, 0, v3")
    a("v_mov_b32 v3, 0x3f803f80")
    a(f"v_cndmask_b32 v{SEL}, 0, v3, vcc")
    for i in range(1, 4): a(f"v_mov_b32 v{SEL+i}, v{SEL}")
    for r in range(ACC, ACC + 112): a(f"v_mov_b32 v{r}, 0")
    for r in range(RS, SEL): a(f"v_mov_b32 v{r}, 0")
    a("s_mov_b32 s46, 0")
    a(f"s_mov_b32 s47, {NCH}")

    def reads(ks):
        o = [f"ds_read_b128 {vr(FA[ks],4)}, v{7+ks}"]
        for t in range(7):
            for q in range(2):
                o.append(f"ds_read_b64_tr_b16 {vr(FB[ks]+4*t+2*q,2)}, v9 offset:{(ks*7+t)*1024+q*256}")
        return o
    def mf(ks, w, isv):
        A = vr(FA[ks], 4)
        main = []
        for t in range(7):
            B = vr(FB[ks] + 4*t, 4); D = vr(ACC + 16*t, 16)
            main.append(f"v_mfma_f32_32x32x16_bf16 {D}, {A}, {B}, {D}" if isv else f"v_mfma_f32_32x32x16_bf16 {D}, {B}, {A}, {D}")
        small = [f"v_mfma_f32_4x4x4_16b_bf16 {vr(SQ1,4)}, {vr(FA[ks],2)}, {vr(FA[ks],2)}, {vr(SQ1,4)}",
                 f"v_mfma_f32_16x16x32_bf16 {vr(RS,4)}, {vr(SEL,4)}, {A}, {vr(RS,4)}",
                 f"v_mfma_f32_4x4x4_16b_bf16 {vr(SQ2,4)}, {vr(FA[ks]+2,2)}, {vr(FA[ks]+2,2)}, {vr(SQ2,4)}",
                 f"v_mfma_f32_16x16x32_bf16 {vr(CS0,4)}, {vr(SEL,4)}, {vr(FB[ks]+4*w,4)}, {vr(CS0,4)}"]
        if w < 3:
            small.append(f"v_mfma_f32_16x16x32_bf16 {vr(CS1,4)}, {vr(SEL,4)}, {vr(FB[ks]+4*(w+4),4)}, {vr(CS1,4)}")
        return main, small
    def step(ks, w, isv):
        main, small = mf(ks, w, isv)
        rd = reads(ks ^ 1)
        for t in range(5):
            a(main[t]); a.extend(rd[3*t:3*t+3])
        a(main[5]); a.extend(small[:2]); a(main[6]); a.extend(small[2:])

    a("s_barrier")
    a.extend(reads(0))
    a("s_cmp_eq_u32 s41, 2")
    a("s_cselect_b32 s40, 4, 0")
    a("s_add_u32 s40, s40, s35")
    for v in range(1, 8):
        a(f"s_cmp_eq_u32 s40, {v}")
        a(f"s_cbranch_scc1 K1_LOOP{v}")
    for v in range(8):
        w, isv = v & 3, v >> 2
        a.label(f"K1_LOOP{v}")
        a("s_waitcnt lgkmcnt(0)")
        step(0, w, isv)
        a(f"s_add_u32 s46, s46, {SLOT}")
        a(f"s_cmp_eq_u32 s46, {RING*SLOT}")
        a("s_cselect_b32 s46, 0, s46")
        a("s_waitcnt lgkmcnt(0)")
        a("s_barrier")
        a("v_add_u32 v7, s46, v4"); a("v_add_u32 v9, s46, v6"); a("v_add_u32 v8, s46, v5")
        step(1, w, isv)
        a("s_sub_u32 s47, s47, 1")
        a("s_cmp_lg_u32 s47, 0")
        a(f"s_cbranch_scc1 K1_LOOP{v}")
        if v != 7: a("s_branch K1_EPI")

    a.label("K1_EPI")
    T = 128
    a("s_waitcnt lgkmcnt(0)")
    def split_write(src, off):
        a(f"v_cvt_pk_bf16_f32 v{T}, v{src}, v{src}")
        a(f"v_and_b32 v{T+1}, 0xffff0000, v{T}")
        a(f"v_sub_f32 v{T+1}, v{src}, v{T+1}")
        a(f"v_cvt_pk_bf16_f32 v{T+2}, v{src}, v{T+1}")
        a(f"v_and_b32 v{T}, 0xffff0000, v{T+2}")
        a(f"v_sub_f32 v{T+1}, v{T+1}, v{T}")
        a(f"v_cvt_pk_bf16_f32 v{T+3}, v{T+1}, 0")
        a(f"ds_write_b64 v10, {vr(T+2,2)} offset:{off}")
    a("v_lshlrev_b32 v11, 3, v1")
    a(f"v_add_u32 v11, {SCR_CS}, v11")
    a("s_lshl_b32 s40, s35, 8")
    a("v_add_u32 v10, s40, v11")
    split_write(CS0, 0)
    a("s_cmp_eq_u32 s35, 3")
    a("s_cbranch_scc1 K1_NOCS1")
    split_write(CS1, 1024)
    a.label("K1_NOCS1")
    for i in range(4): a(f"v_add_f32 v{SQ1+i}, v{SQ1+i}, v{SQ2+i}")
    a("v_and_b32 v3, 3, v0")
    for i in range(1, 4):
        a(f"v_cmp_eq_u32 vcc, {i}, v3")
        a(f"v_cndmask_b32 v{SQ1}, v{SQ1}, v{SQ1+i}, vcc")
    a(f"v_mov_b32 v{SQ2}, v{SQ1}")
    a(f"v_permlane32_swap_b32 v{SQ1}, v{SQ2}")
    a(f"v_add_f32 v{SQ1}, v{SQ1}, v{SQ2}")
    inv = f32hex(1.0 / 640.0)
    a(f"v_mul_f32 v{RS}, {inv}, v{RS}")
    a(f"v_mul_f32 v{SQ1}, {inv}, v{SQ1}")
    a(f"v_fma_f32 v{SQ1}, -v{RS}, v{RS}, v{SQ1}")
    a(f"v_max_f32 v{SQ1}, 0, v{SQ1}")
    def rbf(r):
        a(f"v_cvt_pk_bf16_f32 v{r}, v{r}, v{r}")
        a(f"v_and_b32 v{r}, 0xffff0000, v{r}")
    rbf(SQ1)
    a(f"v_add_f32 v{SQ1}, {f32hex(1e-5)}, v{SQ1}")
    rbf(SQ1)
    a(f"v_sqrt_f32 v{SQ1}, v{SQ1}")
    rbf(SQ1)
    a(f"v_rcp_f32 v12, v{SQ1}")
    a(f"v_cvt_pk_bf16_f32 v14, -v{RS}, -v{RS}")
    a("v_cmp_gt_u32 vcc, 32, v0")
    a("v_cndmask_b32 v14, 0, v14, vcc")
    a("v_and_b32 v15, 0xffff, v14")
    a("s_waitcnt lgkmcnt(0)")
    a("s_barrier")
    for t in range(7): a(f"ds_read_b64 {vr(T+2*t,2)}, v11 offset:{256*t}")
    a("s_lshl_b32 s48, s33, 2")
    a("s_add_u32 s48, s48, s35")
    a("s_cmp_eq_u32 s41, 2")
    a("s_cbranch_scc1 K1_EPI_V")
    a("s_waitcnt lgkmcnt(0)")
    for t in range(7):
        D = vr(ACC + 16*t, 16)
        a(f"v_mfma_f32_32x32x8bf16_1k {D}, {vr(T+2*t,2)}, v[14:15], {D}")
    a("v_lshlrev_b32 v10, 4, v0")
    a("s_cmp_eq_u32 s41, 3")
    a("s_cbranch_scc1 K1_EPI_H")
    a("s_cmp_eq_u32 s41, 0")
    a(f"s_cselect_b32 s40, {f32hex(QSCALE)}, 1.0")
    a("v_mul_f32 v12, s40, v12")
    a(f"s_mov_b32 s49, {KV_HS}")
    a(f"s_cselect_b32 s49, {QF_HS}, s49")
    a("s_mul_i32 s50, s48, 1280")
    a(f"s_add_u32 s50, s50, {QF}")
    a("s_add_u32 s51, s50, 1024")
    a("s_lshr_b32 s52, s48, 1")
    a("s_mul_i32 s52, s52, 5120")
    a(f"s_add_u32 s52, s52, {KV}")
    a("s_and_b32 s53, s48, 1")
    a("s_lshl_b32 s54, s53, 10")
    a("s_add_u32 s54, s54, s52")
    a("s_lshl_b32 s53, s53, 8")
    a("s_add_u32 s53, s53, s52")
    a("s_add_u32 s53, s53, 2048")
    a("s_cmp_eq_u32 s41, 0")
    a("s_cselect_b32 s50, s50, s54")
    a("s_cselect_b32 s51, s51, s53")
    a("v_mov_b32 v13, v12")
    a("v_mul_lo_u32 v11, v2, s49")
    a("v_lshl_add_u32 v11, v1, 3, v11")
    a("s_cmp_eq_u32 s42, 1"); a("s_cbranch_scc1 K1_QK1")
    a("s_cmp_eq_u32 s42, 2"); a("s_cbranch_scc1 K1_QK2")
    def scale_pack(r0, n, dst, sc=None, relu=False):
        for i in range(0, n, 2):
            s = "v[12:13]" if sc is None else vr(sc + i, 2)
            a(f"v_pk_mul_f32 {vr(r0+i,2)}, {vr(r0+i,2)}, {s}")
        for i in range(0, n, 2):
            a(f"v_cvt_pk_bf16_f32 v{dst+i//2}, v{r0+i}, v{r0+i+1}")
        if relu:
            for i in range(n // 2): a(f"v_pk_max_i16 v{dst+i}, v{dst+i}, 0")
    for ph, (R0, nR) in enumerate([(0, 28), (28, 24), (52, 28)]):
        if ph: a.label(f"K1_QK{ph}")
        R = R0
        while R < R0 + nR:
            u, p = divmod(R, 5)
            r0 = ACC + 4 * (R - R0)
            if p == 2:
                scale_pack(r0, 4, r0)
                a(f"s_mul_i32 s40, s49, {2*u}")
                a("s_add_u32 s40, s40, s51")
                a(f"buffer_store_dwordx2 {vr(r0,2)}, v11, s[24:27], s40 offen")
                R += 1
            else:
                assert p in (0, 3) and R + 1 < R0 + nR
                h = 2*u + (p == 3)
                scale_pack(r0, 8, r0)
                a(f"s_mul_i32 s40, s49, {h}")
                a("s_add_u32 s40, s40, s50")
                a(f"buffer_store_dwordx4 {vr(r0,4)}, v10, s[24:27], s40 offen")
                R += 2
        a("s_endpgm")
    a.label("K1_EPI_H")
    a("v_mov_b32 v13, v12")
    a(f"s_mul_i32 s50, s48, {96*1024}")
    a("s_lshl_b32 s40, s43, 6")
    a("s_add_u32 s50, s50, s40")
    a(f"s_add_u32 s50, s50, {HF}")
    for t in range(7):
        if t == 6:
            a("s_cmp_eq_u32 s34, 15"); a("s_cbranch_scc1 K1_END")
        for j in range(2):
            r0 = ACC + 16*t + 8*j
            scale_pack(r0, 8, r0, relu=True)
            a(f"buffer_store_dwordx4 {vr(r0,4)}, v10, s[24:27], s50 offen offset:{1024*j}")
        a("s_add_u32 s50, s50, 2048")
    a("s_endpgm")
    a.label("K1_EPI_V")
    RV = 160
    a("s_lshl_b32 s40, s35, 7")
    a(f"s_add_u32 s40, s40, {SCR_R}")
    a("v_lshl_add_u32 v10, v1, 2, s40")
    a("ds_write_b32 v10, v12")
    a("v_lshl_add_u32 v10, v2, 4, s40")
    a("s_waitcnt lgkmcnt(0)")
    for g in range(4): a(f"ds_read_b128 {vr(RV+4*g,4)}, v10 offset:{32*g}")
    for t in range(7):
        D = vr(ACC + 16*t, 16)
        a(f"v_mfma_f32_32x32x8bf16_1k {D}, v[14:15], {vr(T+2*t,2)}, {D}")
    a("s_lshr_b32 s52, s48, 1")
    a("s_mul_i32 s52, s52, 5120")
    a("s_and_b32 s53, s48, 1")
    a("s_mul_i32 s53, s53, 1280")
    a("s_add_u32 s52, s52, s53")
    a(f"s_add_u32 s52, s52, {KV+2560}")
    a("v_add_u32 v3, s44, v1")
    a("v_mul_u32_u24 v11, 320, v2")
    a("s_mov_b32 s50, 52429")
    a(f"s_mov_b32 s51, {KV_HS-320}")
    a("s_waitcnt lgkmcnt(0)")
    for t in range(7):
        if t == 6:
            a("s_cmp_eq_u32 s42, 1"); a("s_cbranch_scc1 K1_END")
        a("v_mul_u32_u24 v10, s50, v3")
        a("v_lshrrev_b32 v10, 20, v10")
        a("v_mul_u32_u24 v10, s51, v10")
        a("v_lshl_add_u32 v10, v3, 4, v10")
        a(f"v_add_u32 v{180+t}, v10, v11")
        a("v_add_u32 v3, 32, v3")
        for j in range(2):
            r0 = ACC + 16*t + 8*j
            scale_pack(r0, 8, r0, sc=RV + 8*j)
            a(f"buffer_store_dwordx4 {vr(r0,4)}, v{180+t}, s[24:27], s52 offen offset:{640*j}")
    a("s_endpgm")

    a.label("K1_LOADER")
    a("s_sub_u32 s35, s35, 4")
    a("v_lshrrev_b32 v1, 2, v0")
    a("v_and_b32 v2, 3, v0")
    a("v_bfe_u32 v3, v0, 4, 2")
    a("v_xor_b32 v3, v3, v2")
    a("v_lshlrev_b32 v3, 4, v3")
    a("v_mul_u32_u24 v4, 1280, v1")
    a("v_add_u32 v4, v4, v3")
    a("v_mul_u32_u24 v5, s45, v1")
    a("v_lshl_add_u32 v5, v2, 4, v5")
    a("s_lshl_b32 s46, s33, 2")
    a("s_add_u32 s46, s46, s35")
    a(f"s_mul_i32 s46, s46, {32*1280}")
    a("s_lshl_b32 s47, s43, 1")
    a("s_lshl_b32 s48, s45, 5")
    a("s_lshl_b32 s49, s35, 2")
    a("s_cmp_eq_u32 s35, 3")
    a("s_cselect_b32 s49, 11, s49")
    a("s_lshl_b32 s40, s45, 4")
    a("s_sub_u32 s40, s40, 448")
    for q in range(4):
        a(f"s_add_u32 s3, s49, {q}")
        a(f"s_lshl_b32 s{50+q}, s3, 6")
        a("s_cmp_ge_u32 s3, 7")
        a("s_cselect_b32 s3, s40, 0")
        a(f"s_add_u32 s{50+q}, s{50+q}, s3")
    a("s_lshl_b32 s54, s35, 11")
    a("s_lshl_b32 s55, s49, 10")
    a("s_add_u32 s55, s55, 8192")
    a("s_mov_b32 s56, 0")
    cnt = [0]
    def issue():
        n = cnt[0]; cnt[0] += 1
        a("s_add_u32 m0, s56, s54")
        a(f"s_add_u32 s3, s46, {16*1280}")
        a("buffer_load_dwordx4 v4, s[16:19], s46 offen lds")
        a("s_add_u32 m0, m0, 1024")
        a("s_add_u32 s46, s46, 64")
        a("buffer_load_dwordx4 v4, s[16:19], s3 offen lds")
        a("s_add_u32 m0, s56, s55")
        for q in range(4):
            a(f"s_add_u32 s3, s47, s{50+q}")
            if q == 3:
                a("s_cmp_ge_u32 s35, 2"); a(f"s_cbranch_scc1 K1_SK{n}")
            a("buffer_load_dwordx4 v5, s[20:23], s3 offen lds")
            if q < 3: a("s_add_u32 m0, m0, 1024")
        a.label(f"K1_SK{n}")
        a("s_add_u32 s47, s47, s48")
        a(f"s_add_u32 s56, s56, {SLOT}")
        a(f"s_cmp_eq_u32 s56, {RING*SLOT}")
        a("s_cselect_b32 s56, 0, s56")
    wc = [0]
    def wait(newer, extra=0):
        n = wc[0]; wc[0] += 1
        a(f"s_waitcnt vmcnt({6*newer+extra})")
        if newer:
            a("s_cmp_lt_u32 s35, 2"); a(f"s_cbranch_scc1 K1_W{n}")
            a(f"s_waitcnt vmcnt({5*newer+extra})")
            a.label(f"K1_W{n}")
    a(f"s_mov_b32 s57, {RING}")
    a.label("K1_LPRO")
    issue()
    a("s_sub_u32 s57, s57, 1"); a("s_cmp_lg_u32 s57, 0"); a("s_cbranch_scc1 K1_LPRO")
    a("s_mov_b32 s28, s14"); a("s_mov_b32 s29, s15"); a(f"s_mov_b32 s30, {1536*1280}"); a("s_mov_b32 s31, 0x20000")
    a("s_mov_b32 s36, s8"); a("s_mov_b32 s37, s9"); a(f"s_mov_b32 s38, {640*1280}"); a("s_mov_b32 s39, 0x20000")
    a("v_and_b32 v6, 3, v1")
    a("v_bfe_u32 v7, v1, 2, 1")
    a("v_lshl_add_u32 v7, v7, 3, v6")
    a("v_lshrrev_b32 v8, 3, v1")
    a("v_lshl_add_u32 v7, v8, 2, v7")
    a("v_mul_u32_u24 v7, 1280, v7")
    a("v_lshl_add_u32 v7, v2, 4, v7")
    a("v_lshrrev_b32 v8, 2, v1")
    a("v_mul_u32_u24 v8, 20, v8")
    a("v_add3_u32 v8, v8, v6, 16")
    a("v_mul_u32_u24 v8, 1280, v8")
    a("v_lshl_add_u32 v8, v2, 4, v8")
    a("s_lshl_b32 s58, s2, 2")
    a("s_add_u32 s58, s58, s35")
    a("s_min_u32 s59, s58, 959")
    a("s_mul_i32 s60, s59, 6554")
    a("s_lshr_b32 s60, s60, 16")
    a("s_mul_i32 s61, s60, 10")
    a("s_sub_u32 s61, s59, s61")
    a(f"s_mul_i32 s60, s60, {16*1280}")
    a("s_lshl_b32 s61, s61, 7")
    a("s_add_u32 s60, s60, s61")
    a("s_min_u32 s59, s58, 799")
    a("s_mul_i32 s61, s59, 3277")
    a("s_lshr_b32 s61, s61, 16")
    a("s_mul_i32 s62, s61, 20")
    a("s_sub_u32 s62, s59, s62")
    a(f"s_mul_i32 s63, s61, {20*1280}")
    a("s_sub_u32 s3, s61, 32")
    a(f"s_mul_i32 s3, s3, {80*1280}")
    a("s_cmp_ge_u32 s61, 32")
    a("s_cselect_b32 s63, s3, s63")
    a("s_cselect_b64 vcc, -1, 0")
    a("v_cndmask_b32 v8, v7, v8, vcc")
    a("s_lshl_b32 s62, s62, 6")
    a("s_add_u32 s63, s63, s62")
    a("s_mul_i32 s64, s35, 3072")
    a(f"s_add_u32 s64, s64, {SCR_RL}")
    a("v_lshrrev_b32 v9, 5, v0")
    a("v_lshlrev_b32 v9, 9, v9")
    a("v_bfe_u32 v3, v0, 2, 2")
    a("v_lshl_add_u32 v9, v3, 6, v9")
    a("v_and_b32 v3, 16, v0")
    a("v_lshl_add_u32 v9, v3, 1, v9")
    a("v_lshl_add_u32 v9, v2, 3, v9")
    a("v_add_u32 v9, s64, v9")
    a("v_lshlrev_b32 v10, 4, v0")
    wait(RING - 1)
    a("s_barrier")
    a(f"s_mov_b32 s57, {NCH-RING}")
    a.label("K1_LLOOP")
    wait(RING - 2)
    a("s_barrier")
    issue()
    a("s_sub_u32 s57, s57, 1"); a("s_cmp_lg_u32 s57, 0"); a("s_cbranch_scc1 K1_LLOOP")
    a("s_mov_b32 m0, s64")
    a("s_nop 0")
    a("buffer_load_dwordx4 v7, s[28:31], s60 offen lds")
    a(f"s_add_u32 m0, s64, {1024-64}")
    a("s_nop 0")
    a("buffer_load_dwordx4 v7, s[28:31], s60 offen offset:64 lds")
    a("s_add_u32 m0, s64, 2048")
    a("s_nop 0")
    a("buffer_load_dwordx4 v8, s[36:39], s63 offen lds")
    for c in range(NCH - RING + 1, NCH):
        wait(NCH - 1 - c, 3)
        a("s_barrier")
    a("s_waitcnt vmcnt(0)")
    for q in range(3):
        for h in range(2):
            a(f"ds_read_b64_tr_b16 {vr(16+4*q+2*h,2)}, v9 offset:{1024*q+256*h}")
    a("s_lshl_b32 s60, s58, 11")
    a(f"s_add_u32 s60, s60, {W2F}")
    a("s_lshl_b32 s61, s58, 10")
    a(f"s_add_u32 s61, s61, {WOF}")
    a("s_waitcnt lgkmcnt(0)")
    a("s_cmp_ge_u32 s58, 960"); a("s_cbranch_scc1 K1_LFIN")
    a("buffer_store_dwordx4 v[16:19], v10, s[24:27], s60 offen")
    a("buffer_store_dwordx4 v[20:23], v10, s[24:27], s60 offen offset:1024")
    a("s_cmp_ge_u32 s58, 800"); a("s_cbranch_scc1 K1_LFIN")
    a("buffer_store_dwordx4 v[24:27], v10, s[24:27], s61 offen")
    a.label("K1_LFIN")
    a("s_barrier")
    a("s_barrier")
    a.label("K1_END")
    a("s_endpgm")
```

```python
from asmlib import Asm
from layout import *

def vr(a, n): return f"v[{a}:{a+n-1}]"
RP = 656
RW = 32 * RP
LOG2E = 1.4426950408889634

def tile_decode(a):
    a("s_and_b32 s3, s2, 7")
    a("s_lshr_b32 s32, s2, 3")
    a("s_lshr_b32 s33, s3, 1")
    a("s_lshl_b32 s33, s33, 4")
    a("s_and_b32 s40, s32, 15")
    a("s_add_u32 s33, s33, s40")
    a("s_and_b32 s34, s3, 1")
    a("s_lshl_b32 s34, s34, 1")
    a("s_lshr_b32 s40, s32, 4")
    a("s_add_u32 s34, s34, s40")

def frag_loads(a, base):
    a(f"buffer_load_dwordx4 {vr(base,4)}, v1, s[24:27], s46 offen")
    for t in range(4):
        a(f"buffer_load_dwordx4 {vr(base+4+4*t,4)}, v1, s[24:27], s47 offen offset:{1024*t}")
    a(f"buffer_load_dwordx4 {vr(base+20,4)}, v2, s[24:27], s47 offen")
    a("s_add_u32 s46, s46, 1024")
    a("s_add_u32 s47, s47, 20480")

def frag_mfma(a, base, acc, first=False):
    for t in range(5):
        D = vr(acc + 16*t, 16)
        a(f"v_mfma_f32_32x32x16_bf16 {D}, {vr(base+4+4*t,4)}, {vr(base,4)}, {'0' if first else D}")

def reduce_addrs(a, gwreg):
    a("v_and_b32 v3, 31, v0")
    a(f"v_mul_u32_u24 v3, {RP}, v3")
    a("v_lshrrev_b32 v14, 5, v0")
    a("v_lshl_add_u32 v3, v14, 4, v3")
    a(f"s_mul_i32 s40, {gwreg}, {RW}")
    a("v_add_u32 v3, s40, v3")
    a(f"s_lshl_b32 s40, {gwreg}, 6")
    a("s_mov_b32 s41, 52429")
    for i in range(5):
        a(f"s_add_u32 s42, s40, {256*i}")
        a("v_add_u32 v14, s42, v0")
        a("v_mul_u32_u24 v15, s41, v14")
        a("v_lshrrev_b32 v15, 21, v15")
        a(f"v_mul_u32_u24 v{4+i}, {RP-640}, v15")
        a(f"v_lshl_add_u32 v{4+i}, v14, 4, v{4+i}")
        a(f"v_mul_u32_u24 v{9+i}, {1280-320}, v15")
        a(f"v_lshl_add_u32 v{9+i}, v14, 3, v{9+i}")

def reduce_write(a, acc):
    for t in range(5):
        for g in range(4):
            a(f"ds_write_b128 v3, {vr(acc+16*t+4*g,4)} offset:{128*t+32*g}")

def reduce_read(a, dst):
    for i in range(5):
        for p in range(4):
            a(f"ds_read_b128 {vr(dst+16*i+4*p,4)}, v{4+i} offset:{p*RW}")

def sum4(a, r):
    a(f"v_pk_add_f32 {vr(r,2)}, {vr(r,2)}, {vr(r+4,2)}")
    a(f"v_pk_add_f32 {vr(r+2,2)}, {vr(r+2,2)}, {vr(r+6,2)}")
    a(f"v_pk_add_f32 {vr(r+8,2)}, {vr(r+8,2)}, {vr(r+12,2)}")
    a(f"v_pk_add_f32 {vr(r+10,2)}, {vr(r+10,2)}, {vr(r+14,2)}")
    a(f"v_pk_add_f32 {vr(r,2)}, {vr(r,2)}, {vr(r+8,2)}")
    a(f"v_pk_add_f32 {vr(r+2,2)}, {vr(r+2,2)}, {vr(r+10,2)}")

def round4(a, r):
    a(f"v_cvt_pk_bf16_f32 v{r+4}, v{r}, v{r+1}")
    a(f"v_cvt_pk_bf16_f32 v{r+5}, v{r+2}, v{r+3}")
    a(f"v_lshlrev_b32 v{r}, 16, v{r+4}")
    a(f"v_and_b32 v{r+1}, 0xffff0000, v{r+4}")
    a(f"v_lshlrev_b32 v{r+2}, 16, v{r+5}")
    a(f"v_and_b32 v{r+3}, 0xffff0000, v{r+5}")

X = [16, 48]; CM = 80; O = 96; KM = 112; KT = 120; QT = 122; QM = 124; VV = 128
K2_PRE = 3

def gen_k2(a: Asm):
    a("s_cmp_ge_u32 s2, 256")
    a("s_cbranch_scc1 K2_END")
    a("s_load_dwordx2 s[10:11], s[0:1], 64")
    a("v_lshrrev_b32 v1, 6, v0")
    a("v_and_b32 v0, 63, v0")
    a("v_readfirstlane_b32 s35, v1")
    tile_decode(a)
    a("s_lshl_b32 s36, s3, 2")
    a("s_and_b32 s40, s32, 3")
    a("s_add_u32 s36, s36, s40")
    a("s_lshr_b32 s37, s32, 2")
    a(f"s_mul_i32 s38, s36, {KV_HS}")
    a(f"s_add_u32 s38, s38, {KV}")
    a("v_lshlrev_b32 v1, 4, v0")
    a("s_waitcnt lgkmcnt(0)")
    a("s_mov_b32 s24, s10"); a("s_mov_b32 s25, s11"); a(f"s_mov_b32 s26, {WS_END}"); a("s_mov_b32 s27, 0x20000")
    a("s_cmp_ge_u32 s35, 8")
    a("s_cbranch_scc1 K2_GEMM")

    a("s_lshl_b32 s39, s37, 3")
    a("s_add_u32 s39, s39, s35")
    a(f"s_mul_i32 s40, s36, {QF_HS}")
    a("s_mul_i32 s41, s39, 1280")
    a("s_add_u32 s40, s40, s41")
    if QF: a(f"s_add_u32 s40, s40, {QF}")
    a("v_and_b32 v4, 31, v0")
    a("v_lshlrev_b32 v5, 3, v4")
    a(f"buffer_load_dwordx4 {vr(QM,4)}, v1, s[24:27], s40 offen")
    a(f"buffer_load_dwordx2 {vr(QT,2)}, v5, s[24:27], s40 offen offset:1024")
    a("s_lshl_b32 s41, s35, 10")
    for r in range(5):
        a(f"s_add_u32 m0, s41, {8192*r}")
        a("s_add_u32 s42, s38, m0")
        a("buffer_load_dwordx4 v1, s[24:27], s42 offen lds")
    a("v_mov_b32 v6, v1")
    a("v_lshlrev_b32 v7, 3, v0")
    a("v_add_u32 v7, 2048, v7")
    a("v_lshrrev_b32 v2, 5, v0")
    a("v_mul_u32_u24 v8, 320, v2")
    a("v_lshl_add_u32 v8, v4, 4, v8")
    a("v_add_u32 v8, 2560, v8")
    a("s_mov_b32 s44, 0x000fffff"); a("s_mov_b32 s45, 0x000fffff")
    for i in range(16): a(f"v_mov_b32 v{VV+i}, 0x3f803f80")
    a("s_mov_b32 s48, 0")
    a("s_waitcnt vmcnt(0)")
    a("s_barrier")

    def kreads(off, r6="v9", r7="v10"):
        return [f"ds_read_b128 {vr(KM,4)}, {r6} offset:{off}", f"ds_read_b128 {vr(KM+4,4)}, {r6} offset:{off+1024}",
                f"ds_read_b64 {vr(KT,2)}, {r7} offset:{off}"]
    def vreads(off, j0):
        return ["s_mov_b64 exec, s[44:45]"] + [f"ds_read_b128 {vr(VV+4*j,4)}, v11 offset:{off+640*j}" for j in (j0, j0+1)] + ["s_mov_b64 exec, -1"]
    def M(y, i, c): return f"v_mfma_f32_32x32x16_bf16 {vr(y+16*i,16)}, {vr(KM+4*i,4)}, {vr(QM,4)}, {c}"
    def M3(y): return f"v_mfma_f32_32x32x4_2b_bf16 {vr(y,32)}, {vr(KT,2)}, {vr(QT,2)}, {vr(y,32)}"
    def PV(x, j): return f"v_mfma_f32_32x32x16_bf16 {vr(O,16)}, {vr(VV+4*j,4)}, {vr(x+8*j,4)}, {vr(O,16)}"
    def maxall(y, acc, init):
        o = []
        if init:
            o.append(f"v_max3_f32 v{acc}, v{y}, v{y+1}, v{y+2}"); o.append(f"v_max_f32 v{acc}, v{acc}, v{y+3}"); st = 4
        else: st = 0
        for i in range(st, 32, 2): o.append(f"v_max3_f32 v{acc}, v{y+i}, v{y+i+1}, v{acc}")
        return o

    a.extend(kreads(0, "v6", "v7"))
    a("s_waitcnt lgkmcnt(0)")
    a(M(X[0], 0, "0")); a(M(X[0], 1, "0")); a(M3(X[0]))
    a.extend(maxall(X[0], 12, True))
    a.label("K2_START")
    a("v_mov_b32 v13, v12")
    a("v_permlane32_swap_b32 v12, v13")
    a("v_max_f32 v12, v12, v13")
    a(f"v_sub_f32 v{CM}, 0, v12")
    for i in range(1, 16): a(f"v_mov_b32 v{CM+i}, v{CM}")
    a("v_mov_b32 v9, v6"); a("v_mov_b32 v10, v7"); a("v_mov_b32 v11, v8")
    a(M(X[0], 0, vr(CM,16))); a(M(X[0], 1, vr(CM,16)))
    for i in range(16): a(f"v_mov_b32 v{O+i}, 0")
    for i in range(4): a(f"v_mov_b32 v{X[1]+24+i}, 0")
    a(M3(X[0]))
    a.extend(kreads(5120))
    a.extend(vreads(0, 0))
    a("s_mov_b32 s49, 4")
    a("s_nop 9")
    a.label("K2_LOOP")
    for gi in range(8):
        x, y = X[gi & 1], X[(gi & 1) ^ 1]
        E = lambda i: a(f"v_exp_f32 v{x+i}, v{x+i}")
        C = lambda i: a(f"v_cvt_pk_bf16_f32 v{x+8*(i>>2)+(i&3)}, v{x+2*i}, v{x+2*i+1}")
        def Es(lo, hi):
            for i in range(lo, hi + 1): E(i)
        def Cs(lo, hi):
            for i in range(lo, hi + 1): C(i)
        off = gi * 5120
        a("s_waitcnt lgkmcnt(2)")
        a(M(y, 0, vr(CM,16)))
        Es(0, 3)
        a(PV(y, 3))
        a.extend(vreads(off, 2))
        Es(4, 7); Cs(0, 1)
        a(M(y, 1, vr(CM,16)))
        Cs(2, 3); Es(8, 10)
        a("s_waitcnt lgkmcnt(2)")
        a(PV(x, 0))
        Es(11, 15); Cs(4, 5)
        a(M3(y))
        if gi == 6:
            a("s_cmp_lg_u32 s48, 0"); a("s_cbranch_scc1 K2_NOB2")
            a("s_barrier")
            a("s_mov_b32 s48, 1")
            a.label("K2_NOB2")
        a.extend(kreads(off + 2 * 5120))
        Cs(6, 7); Es(16, 22)
        a(PV(x, 1))
        a.extend(vreads(off + 5120, 0))
        Es(23, 23); Cs(8, 10); Es(24, 24); Cs(11, 11); Es(25, 26)
        a("s_waitcnt lgkmcnt(5)")
        a(PV(x, 2))
        Es(27, 31); Cs(12, 15)
    a("v_add_u32 v9, 40960, v9"); a("v_add_u32 v10, 40960, v10"); a("v_add_u32 v11, 40960, v11")
    a("s_sub_u32 s49, s49, 1")
    a("s_cmp_lg_u32 s49, 0")
    a("s_cbranch_scc1 K2_LOOP")
    a(PV(X[1], 3))
    a("s_waitcnt lgkmcnt(0)")
    a(f"v_cmp_gt_f32 vcc, {f32hex(2.0**40)}, v{O+12}")
    a("s_cmp_eq_u32 s48, 2")
    a("s_cbranch_scc1 K2_FIN")
    a("s_cmp_eq_u64 vcc, -1")
    a("s_cbranch_scc1 K2_FIN")
    a("s_mov_b32 s48, 2")
    a("v_mov_b32 v9, v6"); a("v_mov_b32 v10, v7")
    a("v_mov_b32 v12, 0xff800000")
    a("s_mov_b32 s49, 32")
    a.label("K2_MAXL")
    a.extend(kreads(0))
    a("s_waitcnt lgkmcnt(0)")
    a(M(X[0], 0, "0")); a(M(X[0], 1, "0")); a(M3(X[0]))
    a("v_add_u32 v9, 5120, v9"); a("v_add_u32 v10, 5120, v10")
    a.extend(maxall(X[0], 12, False))
    a("s_sub_u32 s49, s49, 1")
    a("s_cmp_lg_u32 s49, 0")
    a("s_cbranch_scc1 K2_MAXL")
    a.extend(kreads(0, "v6", "v7"))
    for i in range(4): a(f"v_mov_b32 v{VV+12+i}, 0x3f803f80")
    a("s_waitcnt lgkmcnt(0)")
    a("s_branch K2_START")
    a.label("K2_FIN")
    a("s_barrier")
    a(f"v_rcp_f32 v12, v{O+12}")
    a(f"s_mul_i32 s40, s39, {40*1024}")
    a(f"s_add_u32 s40, s40, {OF}")
    a("s_lshl_b32 s41, s36, 10")
    a("s_add_u32 s41, s41, s40")
    a("s_lshr_b32 s42, s36, 1")
    a("s_lshl_b32 s42, s42, 9")
    a("s_and_b32 s43, s36, 1")
    a("s_lshl_b32 s43, s43, 3")
    a("s_add_u32 s42, s42, s43")
    a("s_add_u32 s42, s42, s40")
    a(f"s_add_u32 s42, s42, {32*1024}")
    for i in range(12): a(f"v_mul_f32 v{O+i}, v12, v{O+i}")
    for i in range(6): a(f"v_cvt_pk_bf16_f32 v{X[0]+i}, v{O+2*i}, v{O+2*i+1}")
    a(f"buffer_store_dwordx4 {vr(X[0],4)}, v1, s[24:27], s41 offen")
    a("s_mov_b64 exec, 0xffffffff" if False else "s_mov_b32 exec_hi, 0")
    a(f"buffer_store_dwordx2 {vr(X[0]+4,2)}, v1, s[24:27], s42 offen")
    a("s_barrier")
    a("s_endpgm")

    a.label("K2_GEMM")
    a("s_setprio 3")
    a("s_sub_u32 s35, s35, 8")
    a("v_add_u32 v2, 4096, v1")
    a(f"s_mul_i32 s46, s33, {96*1024}")
    a(f"s_mul_i32 s40, s35, {24*1024}")
    a("s_add_u32 s46, s46, s40")
    a(f"s_add_u32 s46, s46, {HF}")
    a(f"s_mul_i32 s47, s35, {24*20480}")
    a("s_mul_i32 s40, s34, 5120")
    a("s_add_u32 s47, s47, s40")
    a(f"s_add_u32 s47, s47, {W2F}")
    reduce_addrs(a, "s35")
    for r in range(16, 96): a(f"v_mov_b32 v{r}, 0")
    a("s_lshl_b32 s41, s35, 10")
    a("s_add_u32 s41, s41, 40960")
    a("s_barrier")
    a("s_mov_b32 s49, 30")
    a.label("K2_BL")
    a("s_mov_b32 m0, s41")
    a("s_add_u32 s42, s38, s41")
    a("buffer_load_dwordx4 v1, s[24:27], s42 offen lds")
    a("s_add_u32 s41, s41, 4096")
    a("s_sub_u32 s49, s49, 1"); a("s_cmp_lg_u32 s49, 0"); a("s_cbranch_scc1 K2_BL")
    RB = [96, 120, 144]
    for q in range(3): frag_loads(a, RB[q])
    a("s_mov_b32 s49, 7")
    a.label("K2_GL")
    for q in range(3):
        a("s_waitcnt vmcnt(12)")
        frag_mfma(a, RB[q], 16)
        frag_loads(a, RB[q])
    a("s_cmp_lg_u32 s49, 7"); a("s_cbranch_scc1 K2_GNB")
    a("s_barrier")
    a.label("K2_GNB")
    a("s_sub_u32 s49, s49, 1"); a("s_cmp_lg_u32 s49, 0"); a("s_cbranch_scc1 K2_GL")
    for q in range(3):
        a(f"s_waitcnt vmcnt({12-6*q})")
        frag_mfma(a, RB[q], 16)
    a(f"s_mul_i32 s40, s33, {32*1280}")
    a("s_mul_i32 s41, s34, 320")
    a("s_add_u32 s40, s40, s41")
    a(f"s_add_u32 s40, s40, {GB}")
    a("s_barrier")
    reduce_write(a, 16)
    a("s_waitcnt lgkmcnt(0)")
    a("s_barrier")
    reduce_read(a, 16)
    for i in range(5):
        r = 16 + 16 * i
        a(f"s_waitcnt lgkmcnt({min(15, 16-4*i)})")
        sum4(a, r)
        round4(a, r)
        for k in range(4): a(f"v_mul_f32 v{r+4+k}, {f32hex(-LOG2E)}, v{r+k}")
        for k in range(4): a(f"v_exp_f32 v{r+4+k}, v{r+4+k}")
        for k in range(4): a(f"v_add_f32 v{r+4+k}, 1.0, v{r+4+k}")
        for k in range(4): a(f"v_rcp_f32 v{r+4+k}, v{r+4+k}")
        for k in range(4): a(f"v_mul_f32 v{r+k}, v{r+k}, v{r+4+k}")
        a(f"v_cvt_pk_bf16_f32 v{r+8}, v{r}, v{r+1}")
        a(f"v_cvt_pk_bf16_f32 v{r+9}, v{r+2}, v{r+3}")
        a(f"buffer_store_dwordx2 {vr(r+8,2)}, v{9+i}, s[24:27], s40 offen")
    a.label("K2_END")
    a("s_endpgm")

K3_LDS = 4 * RW
def gen_k3(a: Asm):
    a("s_cmp_ge_u32 s2, 256")
    a("s_cbranch_scc1 K3_END")
    a("s_load_dwordx2 s[4:5], s[0:1], 0")
    a("s_load_dwordx2 s[6:7], s[0:1], 48")
    a("s_load_dwordx2 s[10:11], s[0:1], 64")
    a("v_lshrrev_b32 v1, 6, v0")
    a("v_and_b32 v0, 63, v0")
    a("v_readfirstlane_b32 s35, v1")
    tile_decode(a)
    a("v_lshlrev_b32 v1, 4, v0")
    a("v_add_u32 v2, 4096, v1")
    a(f"s_mul_i32 s46, s33, {40*1024}")
    a(f"s_mul_i32 s40, s35, {10*1024}")
    a("s_add_u32 s46, s46, s40")
    a(f"s_add_u32 s46, s46, {OF}")
    a(f"s_mul_i32 s47, s35, {10*20480}")
    a("s_mul_i32 s40, s34, 5120")
    a("s_add_u32 s47, s47, s40")
    a(f"s_add_u32 s47, s47, {WOF}")
    a("s_waitcnt lgkmcnt(0)")
    a("s_mov_b32 s24, s10"); a("s_mov_b32 s25, s11"); a(f"s_mov_b32 s26, {WS_END}"); a("s_mov_b32 s27, 0x20000")
    a("s_mov_b32 s16, s4"); a("s_mov_b32 s17, s5"); a(f"s_mov_b32 s18, {2048*1280}"); a("s_mov_b32 s19, 0x20000")
    a("s_mov_b32 s20, s6"); a("s_mov_b32 s21, s7"); a(f"s_mov_b32 s22, {2048*1280}"); a("s_mov_b32 s23, 0x20000")
    RB = [96 + 24 * q for q in range(5)]
    for q in range(5): frag_loads(a, RB[q])
    reduce_addrs(a, "s35")
    a(f"s_mul_i32 s44, s33, {32*1280}")
    a("s_mul_i32 s41, s34, 320")
    a("s_add_u32 s44, s44, s41")
    a(f"s_add_u32 s45, s44, {GB}")
    XG = 216
    for q in range(5):
        a("s_waitcnt vmcnt(24)")
        frag_mfma(a, RB[q], 16, first=(q == 0))
        frag_loads(a, RB[q])
    for i in range(5):
        a(f"buffer_load_dwordx2 {vr(XG+2*i,2)}, v{9+i}, s[16:19], s44 offen")
        a(f"buffer_load_dwordx2 {vr(XG+10+2*i,2)}, v{9+i}, s[24:27], s45 offen")
    for q in range(5):
        a(f"s_waitcnt vmcnt({34-6*q})")
        frag_mfma(a, RB[q], 16)
    reduce_write(a, 16)
    a("s_waitcnt lgkmcnt(0)")
    a("s_barrier")
    reduce_read(a, 16)
    a("s_waitcnt vmcnt(0)")
    for i in range(5):
        r = 16 + 16 * i
        a(f"s_waitcnt lgkmcnt({min(15, 16-4*i)})")
        sum4(a, r)
        round4(a, r)
        xg = XG + 2 * i
        for k in range(2):
            a(f"v_lshlrev_b32 v{r+4+2*k}, 16, v{xg+10+k}")
            a(f"v_and_b32 v{r+5+2*k}, 0xffff0000, v{xg+10+k}")
        for k in range(4): a(f"v_mul_f32 v{r+k}, v{r+k}, v{r+4+k}")
        round4(a, r)
        for k in range(2):
            a(f"v_lshlrev_b32 v{r+4+2*k}, 16, v{xg+k}")
            a(f"v_and_b32 v{r+5+2*k}, 0xffff0000, v{xg+k}")
        for k in range(4): a(f"v_add_f32 v{r+k}, v{r+k}, v{r+4+k}")
        a(f"v_cvt_pk_bf16_f32 v{r+8}, v{r}, v{r+1}")
        a(f"v_cvt_pk_bf16_f32 v{r+9}, v{r+2}, v{r+3}")
        a(f"buffer_store_dwordx2 {vr(r+8,2)}, v{9+i}, s[20:23], s44 offen")
    a.label("K3_END")
    a("s_endpgm")
```

```python
import struct, math
def f32hex(x): return "0x%08x" % struct.unpack("<I", struct.pack("<f", x))[0]
QSCALE = math.log2(math.e) / math.sqrt(20.0)
QF_HS = 64 * 1280
KV_HS = 32 * 5120
QF = 0
KV = QF + 32 * QF_HS
HF = KV + 32 * KV_HS
W2F = HF + 64 * 96 * 1024
WOF = W2F + 96 * 20 * 1024
OF = WOF + 40 * 20 * 1024
GB = OF + 64 * 40 * 1024
WS_END = GB + 2048 * 1280
```

```python
import sys
from asmlib import Asm, fix_hazards
import k1, k23
NAME = "recurrent_scan__mha_block__dense_activation_relu__prompt"
ref = open(f"cdna_kernels/{NAME}.s.ref").read().split("\n")
hdr = [l for l in ref if l.startswith(";") and "@launch" not in l and "Override launch" not in l and "grid=ceil" not in l]

def kd(name, vgpr, sgpr):
    acc = (vgpr + 3) // 4 * 4
    return f""".p2align 6
.amdhsa_kernel {name}
  .amdhsa_next_free_vgpr {vgpr}
  .amdhsa_next_free_sgpr {sgpr}
  .amdhsa_accum_offset {acc}
  .amdhsa_group_segment_fixed_size 0
  .amdhsa_kernarg_size 72
  .amdhsa_user_sgpr_count 2
  .amdhsa_user_sgpr_kernarg_segment_ptr 1
  .amdhsa_system_sgpr_workgroup_id_x 1
.end_amdhsa_kernel"""

def build(out, verbose=False):
    ks = [("proj_kernel", k1.gen_k1, 512, k1.K1_LDS, 216, 72),
          ("attn_kernel", k23.gen_k2, 768, 163840, 168, 72),
          ("outp_kernel", k23.gen_k3, 256, k23.K3_LDS, 236, 72)]
    txt = list(hdr)
    for n, _, b, lds, _, _ in ks:
        txt.append(f"; @launch kernel={n} grid=(256,1,1) block=({b},1,1) lds={lds}")
    txt += ['.amdgcn_target "amdgcn-amd-amdhsa--gfx950"', ".text"]
    for n, g, _, _, _, _ in ks:
        a = Asm(); g(a)
        lines = fix_hazards(a.lines, verbose)
        txt += [f".globl {n}", ".p2align 8", f".type {n},@function", f"{n}:"]
        txt += [("" if l.endswith(":") else "    ") + l for l in lines]
    txt.append('.section .rodata,"a"')
    for n, _, _, _, v, s in ks:
        txt.append(kd(n, v, s))
    open(out, "w").write("\n".join(txt) + "\n")

if __name__ == "__main__":
    out = sys.argv[1] if len(sys.argv) > 1 else f"cdna_kernels/{NAME}.s"
    build(out, verbose="-v" in sys.argv)
```
